```python
import torch

def _softmax(x, axis=-1):
    return torch.softmax(x, dim=axis)
def _gelu(x):
    return torch.nn.functional.gelu(x, approximate="tanh")
def _silu(x):
    return torch.nn.functional.silu(x)
def _sigmoid(x):
    return torch.sigmoid(x)
def _layernorm(x, axis=-1, eps=1e-5):
    m = x.mean(dim=axis, keepdim=True)
    v = x.var(dim=axis, keepdim=True, unbiased=False)
    return (x - m) / torch.sqrt(v + eps)
def _scatter_add(tgt, idx, src, axis=0):
    return tgt.clone().index_add_(axis, idx, src)
def _segment_sum(src, seg, n):
    out = torch.zeros((n,) + src.shape[1:], dtype=src.dtype)
    return out.index_add_(0, seg, src)
def _pad(x, pw):
    flat = tuple(v for pair in reversed(pw) for v in pair)
    return torch.nn.functional.pad(x, flat)

kernel_name = 'standalone__dcn_v2_cross__recsys'

def setup_inputs():

    _w = (lambda a: (lambda t: t.to(torch.bfloat16) if t.is_floating_point() else t)(torch.as_tensor(a)))
    B, F, D, L = 16384, 26, 16, 6
    Din = min(F * D, 1024)
    return {
        "x0": _w((lambda *s: torch.randn(*s, dtype=torch.bfloat16) * 0.05)(B, Din)),
        "ws": _w((lambda *s: torch.randn(*s, dtype=torch.bfloat16) * 0.05)(L, Din, Din)),
        "bs": _w((lambda *s: torch.randn(*s, dtype=torch.bfloat16) * 0.05)(L, Din)),
    }

def reference(x0, ws, bs):
    x = x0
    for l in range(ws.shape[0]):
        x = x0 * (x @ ws[l] + bs[l]) + x
    return x
```

```python
KN = "standalone__dcn_v2_cross__recsys_kernel"

HEADER = """; Kernarg layout for this problem (48 bytes, ptrs only, base s[0:1]):
"""

def kernel_text(name, body):
    return (f".globl {name}\n.p2align 8\n.type {name},@function\n{name}:\n" + "\n".join(body) + "\n")

def descriptor(name, vgpr, accum, sgpr=102):
    return f""".amdhsa_kernel {name}
  .amdhsa_next_free_vgpr {vgpr}
  .amdhsa_next_free_sgpr {sgpr}
  .amdhsa_accum_offset {accum}
  .amdhsa_group_segment_fixed_size 0
  .amdhsa_kernarg_size 48
  .amdhsa_user_sgpr_count 2
  .amdhsa_user_sgpr_kernarg_segment_ptr 1
  .amdhsa_system_sgpr_workgroup_id_x 1
  .amdhsa_float_denorm_mode_32 3
.end_amdhsa_kernel
"""

def whole(launch_lines, kernels):
    s = HEADER + "\n".join(launch_lines) + "\n"
    s += '.amdgcn_target "amdgcn-amd-amdhsa--gfx950"\n.text\n'
    for name, body, *_ in kernels:
        s += kernel_text(name, body)
    s += '.section .rodata,"a"\n'
    for name, body, vgpr, accum, sgpr in kernels:
        s += ".p2align 6\n" + descriptor(name, vgpr, accum, sgpr)
    return s
```

```python
def R(f, lo, n=1):
    return frozenset((f, lo + i) for i in range(n))


def rs(f, lo, n=1):
    return f"{f}{lo}" if n == 1 else f"{f}[{lo}:{lo + n - 1}]"


class I:
    __slots__ = ("text", "kind", "rd", "wr", "tag", "earliest", "after", "pos", "base", "wide", "gap")

    def __init__(self, text, kind, rd=frozenset(), wr=frozenset(), tag=None, earliest=-10**9, after=(), base=None, wide=False):
        self.text = text
        self.kind = kind
        self.rd = rd
        self.wr = wr
        self.tag = tag
        self.earliest = earliest
        self.after = list(after)
        self.pos = None
        self.base = base
        self.wide = wide
        self.gap = None


class Prog:
    def __init__(self):
        self.ins = []
        self.vmq = []
        self.lgq = []

    def emit(self, i):
        i.pos = len(self.ins)
        self.ins.append(i)
        if i.kind in ("vm_l", "vm_s", "vm_dma"):
            self.vmq.append(i)
            assert len(self.vmq) <= 63, "vmcnt overflow"
        elif i.kind in ("ds_r", "ds_w"):
            self.lgq.append(i)
        return i

    def raw(self, text, kind="salu", rd=frozenset(), wr=frozenset(), **kw):
        return self.emit(I(text, kind, rd, wr, **kw))

    def needed(self, consumers, ops=()):
        regs = set()
        for c in consumers:
            regs |= c.rd
            regs |= c.wr
        vm = lg = None
        for q, which in ((self.vmq, "vm"), (self.lgq, "lg")):
            last = -1
            for n, o in enumerate(q):
                if (o.wr & regs) or (o in ops):
                    last = n
            if last >= 0:
                cnt = len(q) - 1 - last
                if which == "vm":
                    vm = cnt
                else:
                    lg = cnt
        return vm, lg

    def wait(self, vm, lg):
        parts = []
        if vm is not None:
            vm = min(vm, 62)
            parts.append(f"vmcnt({vm})")
            self.vmq = self.vmq[len(self.vmq) - vm:] if vm else []
        if lg is not None:
            lg = min(lg, 14)
            parts.append(f"lgkmcnt({lg})")
            self.lgq = self.lgq[len(self.lgq) - lg:] if lg else []
        if parts:
            self.emit(I("s_waitcnt " + " ".join(parts), "wait"))
            return True
        return False

    def auto(self, i):
        self.wait(*self.needed([i]))
        return self.emit(i)

    def nop(self, n):
        while n > 0:
            k = min(n, 16)
            self.emit(I(f"s_nop {k - 1}", "nop", tag=k))
            n -= k

    def text(self):
        return [i.text for i in self.ins]


def states_between(ins, a, b):
    n = 0
    for i in ins[a + 1:b]:
        if i.kind == "label":
            continue
        n += i.tag if i.kind == "nop" else 1
    return n


def verify(ins, window=24):
    errs = []
    for b, c in enumerate(ins):
        for a in range(max(0, b - window), b):
            p = ins[a]
            need = 0
            if p.kind == "mfma":
                if c.kind == "mfma":
                    ab, cc = c.tag
                    if p.wr & ab:
                        need = 8
                    elif (p.wr & cc) and p.wr != cc:
                        need = 6
                elif c.kind in ("valu", "ds_w", "vm_s", "vm_l", "ds_r", "vm_dma"):
                    if p.wr & (c.rd | c.wr):
                        need = 8
                    if c.kind == "valu" and (p.tag[1] & c.wr):
                        need = max(need, 3)
            elif p.kind == "valu":
                if c.kind == "mfma" and (p.wr & c.rd):
                    need = 2
                sw = {r for r in p.wr if r[0] == "s"}
                if sw:
                    if c.kind in ("vm_l", "vm_s", "vm_dma") and (sw & c.rd):
                        need = 5
                    if c.kind == "valu" and (sw & c.rd):
                        need = 2
                if c.kind == "valu" and c.text.startswith(("v_readfirstlane", "v_readlane")) and (p.wr & c.rd):
                    need = max(need, 1)
                if c.kind == "valu" and c.text.startswith("v_permlane") and (p.wr & c.rd):
                    need = max(need, 2)
            elif p.kind == "vm_s" and p.wide:
                if c.wr & p.rd:
                    need = 2
            elif p.kind == "salu":
                if ("m0", 0) in p.wr and c.kind == "vm_dma":
                    need = 1
            if need and states_between(ins, a, b) < need:
                errs.append(f"hazard need {need}: [{a}] {p.text}  ->  [{b}] {c.text}")
    return errs


def verify_async(ins):
    import re
    errs = []
    vmq, lgq = [], []
    for n, c in enumerate(ins):
        if c.kind == "wait":
            m = re.search(r"vmcnt\((\d+)\)", c.text)
            if m:
                k = int(m.group(1))
                vmq = vmq[len(vmq) - k:] if k and len(vmq) > k else (vmq if k else [])
            m = re.search(r"lgkmcnt\((\d+)\)", c.text)
            if m:
                k = int(m.group(1))
                lgq = lgq[len(lgq) - k:] if k and len(lgq) > k else (lgq if k else [])
            continue
        for o in vmq + lgq:
            if o.wr & (c.rd | c.wr):
                errs.append(f"async: [{o.pos}] {o.text} pending at [{n}] {c.text}")
        if c.kind in ("vm_l", "vm_s", "vm_dma"):
            vmq.append(c)
        elif c.kind in ("ds_r", "ds_w"):
            lgq.append(c)
    return errs
```

```python
import sys
from asmlib import *
from sched import *

NL = 6
LSTRIDE = 338 * 1024
XLDS = 0
BLDS = 53248
LDS_BYTES = BLDS + 6 * 416 * 4
STAMP_OFF = 16 << 20

ACC = 0
X0F = 104
BIAS = 208
TMP = 224
PK = 232
vRdLo, vRdHi, vWrLo, vWrHi, vWrE, vBias, vW, vWE, vGLo, vGHi, vGE, vBiasE = range(240, 252)
vT0, vT1, vT2, vT3 = 252, 253, 254, 255
XK1 = 0
XK02 = 64
RING = 144
NRING = 28
sX0, sWS, sBS, sOUT, sWORK = 4, 6, 8, 10, 14
sWave = 16
sBaseA, sBaseE = 18, 20
sTmp = 22
sSt = 40


def acc_reg(tile, t):
    return (tile * 16 + t * 4) if tile < 6 else 96 + t * 4


def x0_reg(tile, t):
    if tile < 6:
        return X0F + ((tile // 2) * 4 + t) * 8 + (tile % 2) * 4
    return X0F + 96 + t * 4


def xreg(k, t):
    if k < 4:
        return XK02 + 16 * k + 4 * t
    if k < 8:
        return XK1 + 16 * (k - 4) + 4 * t
    return XK02 + 16 * (k - 8) + 4 * t


BLOCKS = [(0, 0), (1, 0), (0, 1), (2, 0), (1, 1), (0, 2), (2, 1), (1, 2), (2, 2)]
CHAINS = {0: [(0, 1), (2, 3)], 1: [(4, 5), (6, 7)], 2: [(8, 9), (10, 11, 12)]}


def layer_order():
    seq = []
    for p, kg in BLOCKS:
        for ch in CHAINS[kg]:
            tiles = [2 * p, 2 * p + 1] + ([6] if p == 2 else [])
            for tile in tiles:
                for t in range(4 if tile < 6 else 2):
                    for k in ch:
                        seq.append((tile, t, k))
    assert len(seq) == 338
    return seq


def frag_off(tile, k):
    if tile < 6:
        return (tile // 2) * 26 * 1024 + k * 2048 + (tile % 2) * 1024
    return k * 1024


def gen_main(stamps=False, wr="b32", bar_pos=(306, 48, 150)):
    P = Prog()
    raw = P.raw
    nst = [0]

    def stamp():
        if stamps:
            i = nst[0]
            nst[0] += 1
            P.wait(None, 0) if P.lgq else None
            raw(f"s_memtime s[{sSt + 4 * i}:{sSt + 4 * i + 1}]")
            raw(f"s_memrealtime s[{sSt + 4 * i + 2}:{sSt + 4 * i + 3}]")
            raw("s_waitcnt lgkmcnt(0)")

    V = lambda n, k=1: R("v", n, k)
    A = lambda n, k=1: R("a", n, k)
    S = lambda n, k=1: R("s", n, k)

    raw("s_cmp_ge_u32 s2, 256")
    raw("s_cbranch_scc1 L_main_end")
    raw("s_load_dwordx8 s[4:11], s[0:1], 0")
    raw("s_load_dwordx4 s[12:15], s[0:1], 32")
    if stamps:
        raw(f"s_memtime s[{sSt}:{sSt + 1}]")
        raw(f"s_memrealtime s[{sSt + 2}:{sSt + 3}]")
        nst[0] = 1
    valu = lambda t, rd=frozenset(), wr=frozenset(): raw(t, "valu", rd, wr)
    valu(f"v_lshrrev_b32 v{vT3}, 6, v0", V(0), V(vT3))
    valu(f"v_and_b32 v{vT0}, 63, v0", V(0), V(vT0))
    valu(f"v_readfirstlane_b32 s{sWave}, v{vT3}", V(vT3), S(sWave))
    valu(f"v_and_b32 v{vT1}, 15, v0", V(0), V(vT1))
    valu(f"v_lshrrev_b32 v{vT2}, 4, v{vT0}", V(vT0), V(vT2))
    valu(f"v_lshlrev_b32 v{vW}, 4, v{vT0}", V(vT0), V(vW))
    raw(f"s_and_b32 s23, s{sWave}, 1")
    raw(f"s_lshr_b32 s24, s{sWave}, 1")
    raw(f"s_lshl_b32 s25, s23, 11")
    raw(f"s_sub_u32 s26, 2048, s25")
    raw(f"s_lshl_b32 s27, s{sWave}, 12")
    valu(f"v_add_u32 v{vRdLo}, s25, v{vW}", V(vW), V(vRdLo))
    valu(f"v_add_u32 v{vRdHi}, s26, v{vW}", V(vW), V(vRdHi))
    valu(f"v_add_u32 v{vWrLo}, s27, v{vRdLo}", V(vRdLo), V(vWrLo))
    valu(f"v_add_u32 v{vWrHi}, s27, v{vRdHi}", V(vRdHi), V(vWrHi))
    raw(f"s_lshl_b32 s28, s24, 3")
    raw(f"s_add_u32 s29, s28, {12 * 4096}")
    valu(f"v_add_u32 v{vWrE}, s29, v{vRdLo}", V(vRdLo), V(vWrE))
    raw(f"s_mul_i32 s30, s2, {64 * 832}")
    raw(f"s_mul_i32 s31, s23, {32 * 832}")
    raw(f"s_add_u32 s32, s30, s31")
    raw(f"s_sub_u32 s33, s30, s31")
    raw(f"s_add_u32 s33, s33, {32 * 832}")
    valu(f"v_mul_u32_u24 v{vGLo}, 832, v{vT1}", V(vT1), V(vGLo))
    valu(f"v_lshl_add_u32 v{vGLo}, v{vT2}, 4, v{vGLo}", V(vT2) | V(vGLo), V(vGLo))
    raw(f"s_lshl_b32 s34, s{sWave}, 6")
    raw(f"s_add_u32 s35, s32, s28")
    raw(f"s_add_u32 s35, s35, {12 * 64}")
    raw(f"s_add_u32 s32, s32, s34")
    raw(f"s_add_u32 s33, s33, s34")
    valu(f"v_add_u32 v{vGE}, s35, v{vGLo}", V(vGLo), V(vGE))
    valu(f"v_add_u32 v{vGHi}, s33, v{vGLo}", V(vGLo), V(vGHi))
    valu(f"v_add_u32 v{vGLo}, s32, v{vGLo}", V(vGLo), V(vGLo))
    valu(f"v_lshlrev_b32 v{vBias}, 5, v{vT2}", V(vT2), V(vBias))
    raw(f"s_lshl_b32 s36, s24, 4")
    raw(f"s_add_u32 s36, s36, {BLDS + 12 * 128}")
    valu(f"v_add_u32 v{vBiasE}, s36, v{vBias}", V(vBias), V(vBiasE))
    raw(f"s_lshl_b32 s36, s{sWave}, 7")
    raw(f"s_add_u32 s36, s36, {BLDS}")
    valu(f"v_add_u32 v{vBias}, s36, v{vBias}", V(vBias), V(vBias))
    raw(f"s_mul_i32 s36, s24, {13 * 1024}")
    raw(f"s_add_u32 s36, s36, {312 * 1024}")
    valu(f"v_add_u32 v{vWE}, s36, v{vW}", V(vW), V(vWE))
    raw(f"s_mul_i32 s36, s{sWave}, {78 * 1024}")
    valu(f"v_add_u32 v{vW}, s36, v{vW}", V(vW), V(vW))
    valu(f"v_min_u32 v{vT3}, 207, v0", V(0), V(vT3))
    valu(f"v_lshlrev_b32 v{vT3}, 2, v{vT3}", V(vT3), V(vT3))
    raw("s_waitcnt lgkmcnt(0)")
    raw(f"s_add_u32 s36, s{sX0}, {16 * 832}")
    raw(f"s_addc_u32 s37, s{sX0 + 1}, 0")
    raw(f"s_add_u32 s38, s{sOUT}, {16 * 832}")
    raw(f"s_addc_u32 s39, s{sOUT + 1}, 0")

    order = layer_order()
    mf = []
    firstA, lastA, firstX, lastX, lastAcc, firstAcc = {}, {}, {}, {}, {}, {}
    fragseq = []
    for l in range(NL):
        for n, (tile, t, k) in enumerate(order):
            g = l * 338 + n
            fa = (l, tile, k)
            if fa not in firstA:
                firstA[fa] = g
                fragseq.append(fa)
            lastA[fa] = g
            fx = (l, k, t)
            firstX.setdefault(fx, g)
            lastX[fx] = g
            firstAcc.setdefault((l, tile, t), g)
            lastAcc[(l, tile, t)] = g
            mf.append((l, tile, t, k))
    slot = {fa: i % NRING for i, fa in enumerate(fragseq)}
    mfi = []
    for g, (l, tile, t, k) in enumerate(mf):
        d = ACC + acc_reg(tile, t)
        a = RING + 4 * slot[(l, tile, k)]
        b = xreg(k, t)
        first = (l == 0 and firstAcc[(0, tile, t)] == g)
        c = "0" if first else rs("v", d, 4)
        mfi.append(I(f"v_mfma_f32_16x16x32_bf16 {rs('v', d, 4)}, {rs('a', a, 4)}, {rs('a', b, 4)}, {c}", "mfma",
                     rd=A(a, 4) | A(b, 4) | (frozenset() if first else V(d, 4)), wr=V(d, 4),
                     tag=(A(a, 4) | A(b, 4), frozenset() if first else V(d, 4))))

    wl = []
    for i, fa in enumerate(fragseq):
        l, tile, k = fa
        a = RING + 4 * slot[fa]
        off = l * LSTRIDE + frag_off(tile, k)
        cls = "E" if tile == 6 else "A"
        ins = I(None, "vm_l", rd=V(vWE if cls == "E" else vW), wr=A(a, 4), base=(cls, off),
                earliest=(lastA[fragseq[i - NRING]] + 1 if i >= NRING else -10**9))
        wl.append(ins)
    curbase = {"A": None, "E": None}
    sbase = {"A": sBaseA, "E": sBaseE}

    def base_ok(ins):
        cls, off = ins.base
        return curbase[cls] is not None and -4096 <= off - curbase[cls] <= 4095

    def base_ops(ins):
        cls, off = ins.base
        nb = off + 4096
        s = sbase[cls]
        return nb, [I(f"s_add_u32 s{s}, s{sWORK}, {nb}", "salu", wr=S(s)), I(f"s_addc_u32 s{s + 1}, s{sWORK + 1}, 0", "salu", wr=S(s + 1))]

    def finish_load(ins):
        cls, off = ins.base
        a = min(r[1] for r in ins.wr)
        ins.text = f"global_load_dwordx4 {rs('a', a, 4)}, v{vWE if cls == 'E' else vW}, s[{sbase[cls]}:{sbase[cls] + 1}] offset:{off - curbase[cls]}"

    def emit_load_now(ins):
        if not base_ok(ins):
            nb, ops = base_ops(ins)
            for o in ops:
                P.emit(o)
            curbase[ins.base[0]] = nb
        finish_load(ins)
        P.emit(ins)

    bar = {}
    for l in range(NL):
        bar[(l, 0)] = (l - 1) * 338 + bar_pos[0] if l > 0 else -1
        bar[(l, 1)] = l * 338 + bar_pos[1]
        bar[(l, 2)] = l * 338 + bar_pos[2]
    kgroup = lambda k: 0 if k < 4 else (1 if k < 8 else 2)

    xl = []
    prevuse = {}
    for fx in sorted(firstX, key=lambda f: firstX[f]):
        l, k, t = fx
        b = xreg(k, t)
        e = max(bar[(l, kgroup(k))] + 1, prevuse.get(b, -10**9) + 1)
        prevuse[b] = lastX[fx]
        vb = vRdLo if t < 2 else vRdHi
        ins = I(f"ds_read_b128 {rs('a', b, 4)}, v{vb} offset:{XLDS + k * 4096 + (t & 1) * 1024}", "ds_r", rd=V(vb), wr=A(b, 4), earliest=e, tag=fx)
        assert e < firstX[fx] - 4 or l == 0, (fx, e, firstX[fx])
        xl.append(ins)

    ev = []
    ew = []
    eb = []
    barwrites = {}
    pkuse = [None] * 8
    biasuse = {}
    x0loads = {}

    def gaddr(tile, t):
        if tile < 6:
            return (vGLo if t < 2 else vGHi), (tile // 2) * 256
        return vGE, 0

    def x0load(p, t):
        if p < 3:
            va, off = gaddr(2 * p, t)
            d = x0_reg(2 * p, t) + 4
            return I(f"global_load_dwordx4 {rs('v', d, 4)}, v{va}, s[{sX0 if t % 2 == 0 else 36}:{(sX0 if t % 2 == 0 else 36) + 1}] offset:{off}", "vm_l", rd=V(va), wr=V(d, 4))
        d = x0_reg(6, t) + 2
        return I(f"global_load_dwordx2 {rs('v', d, 2)}, v{vGE}, s[{sX0 if t % 2 == 0 else 36}:{(sX0 if t % 2 == 0 else 36) + 1}]", "vm_l", rd=V(vGE), wr=V(d, 2))

    def lds_waddr(p, t):
        if p < 3:
            return (vWrLo if t < 2 else vWrHi), XLDS + p * 16384 + (t & 1) * 1024
        return vWrE, XLDS + t * 1024

    def x0write(p, t, wide):
        va, off = lds_waddr(p, t)
        n = 4 if p < 3 else 2
        d = (x0_reg(2 * p, t) + 4) if p < 3 else (x0_reg(6, t) + 2)
        if wide:
            return [I(f"ds_write_b{32 * n} v{va}, {rs('v', d, n)} offset:{off}", "ds_w", rd=V(va) | V(d, n))]
        return [I(f"ds_write_b32 v{va}, v{d + j} offset:{off + 4 * j}", "ds_w", rd=V(va) | V(d + j)) for j in range(n)]

    def x0unpack(p, t, after):
        n = 4 if p < 3 else 2
        b = x0_reg(2 * p, t) if p < 3 else x0_reg(6, t)
        out = []
        for j in range(n):
            src = b + n + j
            out.append(I(f"v_lshlrev_b32 v{b + 2 * j}, 16, v{src}", "valu", rd=V(src), wr=V(b + 2 * j), after=after))
            out.append(I(f"v_and_b32 v{b + 2 * j + 1}, 0xffff0000, v{src}", "valu", rd=V(src), wr=V(b + 2 * j + 1), after=after))
        return out

    wi = 0
    for t in range(4):
        P.emit(x0load(0, t))
    for _ in range(8):
        emit_load_now(wl[wi]); wi += 1
    for t in range(4):
        P.emit(x0load(1, t))
    for _ in range(8):
        emit_load_now(wl[wi]); wi += 1
    for t in range(4):
        P.emit(x0load(2, t))
    for t in range(2):
        P.emit(x0load(3, t))
    for l in range(NL):
        if l < 4:
            P.emit(I(f"global_load_dword v{BIAS + l}, v{vT3}, s[{sBS}:{sBS + 1}] offset:{832 * l}", "vm_l", rd=V(vT3), wr=V(BIAS + l)))
        else:
            if l == 4:
                raw(f"s_add_u32 s{sBS}, s{sBS}, {832 * 4}")
                raw(f"s_addc_u32 s{sBS + 1}, s{sBS + 1}, 0")
            P.emit(I(f"global_load_dword v{BIAS + l}, v{vT3}, s[{sBS}:{sBS + 1}] offset:{832 * (l - 4)}", "vm_l", rd=V(vT3), wr=V(BIAS + l)))
    while wi < NRING:
        emit_load_now(wl[wi]); wi += 1
    valu(f"v_lshlrev_b32 v{vT3}, 1, v{vT3}", V(vT3), V(vT3))
    valu(f"v_mov_b32 v{vT0}, 1.0", wr=V(vT0))
    valu(f"v_mov_b32 v{vT1}, 1.0", wr=V(vT1))
    w0 = []
    for t in range(4):
        for i in x0write(0, t, True):
            P.auto(i); w0.append(i)
    P.wait(None, 0)
    raw("s_barrier", "bar")
    stamp()
    xi = 0
    while xl[xi].tag[0] == 0 and xl[xi].tag[1] < 4:
        P.emit(xl[xi]); xi += 1
    for t in range(4):
        ws_ = x0write(1, t, wr != "b32")
        ew += ws_
        barwrites.setdefault((0, 1), []).extend(ws_)
    for t in range(4):
        ev += x0unpack(0, t, [])
    for t in range(4):
        ev += x0unpack(1, t, barwrites[(0, 1)])
    for p in (2, 3):
        for t in range(4 if p < 3 else 2):
            ws_ = x0write(p, t, wr != "b32")
            for i in ws_:
                i.earliest = bar[(0, 1)] + 1
            ew += ws_
            barwrites.setdefault((0, 2), []).extend(ws_)
    x2w = list(barwrites[(0, 2)])
    prevw = []
    for l in range(NL):
        src = BIAS + l
        i1 = I(f"v_lshlrev_b32 v{vT2}, 16, v{src}", "valu", rd=V(src), wr=V(vT2), earliest=bar[(0, 1)] + 1)
        i2 = I(f"v_and_b32 v{src}, 0xffff0000, v{src}", "valu", rd=V(src), wr=V(src))
        i3 = I(f"v_add_f32 v{vT0}, v{vT0}, v{vT2}", "valu", rd=V(vT0) | V(vT2), wr=V(vT0), after=prevw)
        i4 = I(f"v_add_f32 v{vT1}, v{vT1}, v{src}", "valu", rd=V(vT1) | V(src), wr=V(vT1), after=prevw)
        ev += [i1, i2, i3, i4]
        prevw = [I(f"ds_write_b32 v{vT3}, v{vT0} offset:{BLDS + l * 1664}", "ds_w", rd=V(vT3) | V(vT0), after=[i3]),
                 I(f"ds_write_b32 v{vT3}, v{vT1} offset:{BLDS + l * 1664 + 4}", "ds_w", rd=V(vT3) | V(vT1), after=[i4])]
        ew += prevw
        barwrites[(0, 2)].extend(prevw)
    biasuse[0] = ev[-1]
    for p in (2, 3):
        for t in range(4 if p < 3 else 2):
            ev += x0unpack(p, t, x2w)

    pkc = 0
    nset = 0
    for l in range(NL):
        last = l == NL - 1
        for p in range(4):
            tiles = [2 * p, 2 * p + 1] if p < 3 else [6]
            bs_ = nset % 2
            nset += 1
            breg = BIAS + 8 * bs_
            bl = []
            for h, tile in enumerate(tiles):
                va = vBias if p < 3 else vBiasE
                off = l * 1664 + (p * 512 + h * 16 if p < 3 else 0)
                start = min(lastAcc[(l, tiles[0], t)] for t in range(4 if p < 3 else 2))
                ins = I(f"ds_read_b128 {rs('v', breg + 4 * h, 4)}, v{va} offset:{off}", "ds_r", rd=V(va), wr=V(breg + 4 * h, 4),
                        earliest=max(start - 12, bar[(0, 2)] + 1), after=[biasuse[bs_]] if bs_ in biasuse else [])
                eb.append(ins)
                bl.append(ins)
            for t in range(4 if p < 3 else 2):
                grp = []
                pk0 = (pkc % 2) * 4
                pkc += 1
                for h, tile in enumerate(tiles):
                    a = ACC + acc_reg(tile, t)
                    x = x0_reg(tile, t)
                    tm = TMP + 4 * h
                    e = lastAcc[(l, tile, t)] + 8
                    adds = [I(f"v_add_f32 v{tm + i}, v{a + i}, v{breg + 4 * h + i}", "valu", rd=V(a + i) | V(breg + 4 * h + i), wr=V(tm + i), earliest=e, after=[bl[h]], tag=("acc", l, tile, t)) for i in range(4)]
                    muls = [I(f"v_mul_f32 v{tm + i}, v{tm + i}, v{x + i}", "valu", rd=V(tm + i) | V(x + i), wr=V(tm + i)) for i in range(4)]
                    cv = []
                    for j in range(2):
                        r = PK + pk0 + 2 * h + j
                        cv.append(I(f"v_cvt_pk_bf16_f32 v{r}, v{tm + 2 * j}, v{tm + 2 * j + 1}", "valu", rd=V(tm + 2 * j, 2), wr=V(r),
                                    after=[pkuse[r - PK]] if pkuse[r - PK] else []))
                    ev += adds + muls + cv
                    biasuse[bs_] = adds[-1]
                    grp.append(cv)
                n = 2 * len(tiles)
                allcv = [c for cv in grp for c in cv]
                if last:
                    va, off = gaddr(tiles[0], t)
                    sb = sOUT if t % 2 == 0 else 38
                    ins = I(f"global_store_dwordx{n} v{va}, {rs('v', PK + pk0, n)}, s[{sb}:{sb + 1}] offset:{off}", "vm_s", rd=V(va) | V(PK + pk0, n), after=allcv, wide=True)
                    ew.append(ins)
                    for j in range(n):
                        pkuse[pk0 + j] = ins
                else:
                    va, off = lds_waddr(p, t)
                    key = (l + 1, min(p, 2))
                    if wr == "b32":
                        ws_ = [I(f"ds_write_b32 v{va}, v{PK + pk0 + j} offset:{off + 4 * j}", "ds_w", rd=V(va) | V(PK + pk0 + j), after=[allcv[j]]) for j in range(n)]
                        for j in range(n):
                            pkuse[pk0 + j] = ws_[j]
                    elif wr == "b64":
                        ws_ = [I(f"ds_write_b64 v{va}, {rs('v', PK + pk0 + 2 * j, 2)} offset:{off + 8 * j}", "ds_w", rd=V(va) | V(PK + pk0 + 2 * j, 2), after=grp[j]) for j in range(n // 2)]
                        for j in range(n):
                            pkuse[pk0 + j] = ws_[j // 2]
                    else:
                        ws_ = [I(f"ds_write_b{32 * n} v{va}, {rs('v', PK + pk0, n)} offset:{off}", "ds_w", rd=V(va) | V(PK + pk0, n), after=allcv)]
                        for j in range(n):
                            pkuse[pk0 + j] = ws_[0]
                    ew += ws_
                    barwrites.setdefault(key, []).extend(ws_)

    bargap = {g: key for key, g in bar.items() if g >= 0}
    vi = wi2 = bi = 0
    pend_s = []
    pend_base = None
    NG = len(mfi)
    P.wait(*P.needed([mfi[0]]))
    stats = dict(over=0)

    def ready(ins, g):
        return ins.earliest <= g and all(a.pos is not None and (a.gap is None or a.gap < g or a.kind == "valu") for a in ins.after)

    for g in range(NG):
        P.emit(mfi[g])
        mfi[g].gap = g
        if stamps and g % 338 == 337:
            stamp()
        nxt = [mfi[g + 1]] if g + 1 < NG else []
        if g in bargap:
            key = bargap[g]
            ws_ = barwrites.get(key, [])
            assert all(w.pos is not None for w in ws_), f"barrier {key} at gap {g}: writes not issued"
            P.wait(*P.needed(nxt, ops=ws_))
            raw("s_barrier", "bar")
            continue
        pick = []
        if wi < len(wl) and not base_ok(wl[wi]) and pend_base is None:
            nb, ops = base_ops(wl[wi])
            pend_s += ops
            pend_base = (wl[wi].base[0], nb, ops[-1])
        canW = wi < len(wl) and base_ok(wl[wi]) and ready(wl[wi], g)
        canX = xi < len(xl) and ready(xl[xi], g)
        canB = bi < len(eb) and ready(eb[bi], g)
        canZ = wi2 < len(ew) and ready(ew[wi2], g)
        slots = 2
        if canW:
            finish_load(wl[wi])
            pick.append(wl[wi]); wi += 1; slots -= 1
        if canX:
            pick.append(xl[xi]); xi += 1; slots -= 1
        elif canB:
            pick.append(eb[bi]); bi += 1; slots -= 1
        if slots == 2 and canZ:
            pick.append(ew[wi2]); wi2 += 1; slots = 0
        while slots > 0 and vi < len(ev):
            c = ev[vi]
            if c.earliest <= g and all((a.pos is not None and (a.gap is None or a.gap < g)) or (a in pick and a.kind == "valu") for a in c.after):
                pick.append(c); vi += 1; slots -= 1
            else:
                break
        used1 = P.wait(*P.needed(pick + nxt))
        if not used1 and pend_s:
            o = pend_s.pop(0); o.gap = g; P.emit(o)
        for i in pick:
            i.gap = g
            P.emit(i)
        while slots > 0 and pend_s:
            o = pend_s.pop(0); o.gap = g; P.emit(o); slots -= 1
        if pend_base and pend_base[2].pos is not None:
            curbase[pend_base[0]] = pend_base[1]
            pend_base = None
        if nxt:
            l, tile, t, k = mf[g + 1]
            if l > 0 and firstAcc[(l, tile, t)] == g + 1:
                for c in ev[vi:]:
                    assert c.tag != ("acc", l - 1, tile, t), f"acc WAR at gap {g}: {c.text}"
    assert wi == len(wl) and xi == len(xl)
    P.nop(8)
    while vi < len(ev) or wi2 < len(ew) or bi < len(eb):
        done = False
        if bi < len(eb) and all(a.pos is not None for a in eb[bi].after):
            P.auto(eb[bi]); bi += 1; done = True
        if wi2 < len(ew) and all(a.pos is not None for a in ew[wi2].after):
            P.auto(ew[wi2]); wi2 += 1; done = True
        if vi < len(ev) and all(a.pos is not None for a in ev[vi].after):
            P.auto(ev[vi]); vi += 1; done = True
        assert done
    if stamps:
        stamp()
        raw("s_waitcnt vmcnt(0)")
        P.vmq = []
        stamp()
        raw(f"s_lshl_b32 s22, s2, 2")
        raw(f"s_add_u32 s22, s22, s{sWave}")
        raw(f"s_lshl_b32 s22, s22, 8")
        raw(f"s_add_u32 s22, s22, {STAMP_OFF}")
        raw("v_mov_b32 v0, s22")
        for i in range(nst[0]):
            for j in range(4):
                raw(f"v_mov_b32 v{4 + j}, s{sSt + 4 * i + j}")
            raw(f"global_store_dwordx4 v0, v[4:7], s[{sWORK}:{sWORK + 1}] offset:{16 * i}")
            raw("s_nop 1")
    raw("L_main_end:", "label")
    raw("s_endpgm")
    errs = verify(P.ins) + verify_async(P.ins)
    for e in errs[:20]:
        print("ERR", e, file=sys.stderr)
    assert not errs
    return P.text(), nst[0]


def gen_prep():
    b = []
    e = b.append
    e("s_load_dwordx2 s[4:5], s[0:1], 8")
    e("s_load_dwordx2 s[6:7], s[0:1], 40")
    e("v_lshrrev_b32 v1, 6, v0")
    e("v_and_b32 v2, 63, v0")
    e("v_readfirstlane_b32 s3, v1")
    e("s_lshl_b32 s8, s2, 2")
    e("s_add_u32 s8, s8, s3")
    e("s_cmp_ge_u32 s8, 1014")
    e("s_cbranch_scc1 L_prep_end")
    e(f"s_mul_i32 s9, s8, {(1 << 20) // 169 + 1}")
    e("s_lshr_b32 s9, s9, 20")
    e("s_mul_i32 s10, s9, 169")
    e("s_sub_u32 s10, s8, s10")
    e(f"s_mul_i32 s11, s10, {(1 << 16) // 13 + 1}")
    e("s_lshr_b32 s11, s11, 16")
    e("s_mul_i32 s12, s11, 13")
    e("s_sub_u32 s12, s10, s12")
    e("s_mul_i32 s13, s9, 346112")
    e(f"s_mul_i32 s14, s11, {32 * 832}")
    e("s_add_u32 s13, s13, s14")
    e("s_lshl_b32 s14, s12, 6")
    e("s_add_u32 s13, s13, s14")
    e("v_lshrrev_b32 v3, 4, v2")
    e(f"v_mul_u32_u24 v3, {8 * 832}, v3")
    e("v_bfe_u32 v4, v2, 2, 2")
    e("v_lshl_add_u32 v3, v4, 4, v3")
    e("v_and_b32 v4, 3, v2")
    e("v_lshl_add_u32 v3, v4, 1, v3")
    e("v_add_u32 v3, s13, v3")
    e(f"v_add_u32 v5, {4 * 832}, v3")
    e(f"s_mul_i32 s15, s9, {LSTRIDE}")
    e("s_and_b32 s16, s12, 3")
    e(f"s_mul_i32 s16, s16, {78 * 1024}")
    e("s_lshr_b32 s17, s12, 2")
    e(f"s_mul_i32 s17, s17, {26 * 1024}")
    e("s_add_u32 s16, s16, s17")
    e("s_lshl_b32 s17, s11, 11")
    e("s_add_u32 s16, s16, s17")
    e("s_lshl_b32 s17, s11, 10")
    e(f"s_add_u32 s17, s17, {312 * 1024}")
    e("s_cmp_lt_u32 s12, 12")
    e("s_cselect_b32 s16, s16, s17")
    e(f"s_cselect_b32 s17, 1, 13")
    e(f"s_lshl_b32 s17, s17, 10")
    e("s_add_u32 s15, s15, s16")
    e("v_lshlrev_b32 v6, 4, v2")
    e("v_add_u32 v6, s15, v6")
    e("v_add_u32 v7, s17, v6")
    e("s_waitcnt lgkmcnt(0)")
    for h in range(2):
        for j in range(8):
            va = 3 if j < 4 else 5
            op = "global_load_short_d16" if j % 2 == 0 else "global_load_short_d16_hi"
            e(f"global_load_ushort v{16 + 8 * h + j}, v{va}, s[4:5] offset:{(j % 4) * 832 + 8 * h}")
    e("s_waitcnt vmcnt(0)")
    for h in range(2):
        for j in range(4):
            e(f"v_lshl_or_b32 v{8 + 4 * h + j}, v{16 + 8 * h + 2 * j + 1}, 16, v{16 + 8 * h + 2 * j}")
    e("global_store_dwordx4 v6, v[8:11], s[6:7]")
    e("global_store_dwordx4 v7, v[12:15], s[6:7]")
    e("L_prep_end:")
    e("s_endpgm")
    return b


def gen(**kw):
    body, nst = gen_main(**kw)
    txt = whole([f"; @launch kernel=prep_kernel grid=(254,1,1) block=(256,1,1) lds=0",
                 f"; @launch kernel={KN} grid=(256,1,1) block=(256,1,1) lds={LDS_BYTES}"],
                [("prep_kernel", gen_prep(), 32, 32, 32), (KN, body, 512, 256, 102)])
    return txt, nst


if __name__ == "__main__":
    for name, kw in {"v1": {}, "v1s": dict(stamps=True), "v1_b64": dict(wr="b64"), "v1_b128": dict(wr="b128"),
                     "v1s_b64": dict(wr="b64", stamps=True), "v1s_b128": dict(wr="b128", stamps=True)}.items():
        t, nst = gen(**kw)
        open(f"{name}.s", "w").write(t)
        print(name, len(t), "bytes", t.count("\n"), "lines", nst, "stamps")
```
